```python
import torch

def _softmax(x, axis=-1):
    return torch.softmax(x, dim=axis)

def _gelu(x):
    return torch.nn.functional.gelu(x, approximate='tanh')

def _silu(x):
    return torch.nn.functional.silu(x)

def _sigmoid(x):
    return torch.sigmoid(x)

def _layernorm(x, axis=-1, eps=1e-05):
    m = x.mean(dim=axis, keepdim=True)
    v = x.var(dim=axis, keepdim=True, unbiased=False)
    return (x - m) / torch.sqrt(v + eps)

def _scatter_add(tgt, idx, src, axis=0):
    return tgt.clone().index_add_(axis, idx, src)

def _segment_sum(src, seg, n):
    out = torch.zeros((n,) + src.shape[1:], dtype=src.dtype)
    return out.index_add_(0, seg, src)

def _pad(x, pw):
    flat = tuple((v for pair in reversed(pw) for v in pair))
    return torch.nn.functional.pad(x, flat)
kernel_name = 'parallel_sum__memory_aug_recurrent_mem_tr__glu_gated_reglu__prompt'

def setup_inputs():

    _w = lambda a: (lambda t: t.to(torch.bfloat16) if t.is_floating_point() else t)(torch.as_tensor(a))

    def _A_setup():
        B, S, Dm = (1, 2048, 640)
        H, Dh = (32, 192)
        M, seg = (8, 32)
        seg = min(seg, S)
        S = S // seg * seg
        return {'x': _w((lambda *s: torch.randn(*s, dtype=torch.bfloat16) * 0.05)(B, S, Dm)), 'mem0': _w((lambda *s: torch.randn(*s, dtype=torch.bfloat16) * 0.2)(B, M, Dm)), 'Wq': _w((lambda *s: torch.randn(*s, dtype=torch.bfloat16) * 1.6)(Dm, H, Dh) * Dm ** (-0.5)), 'Wk': _w((lambda *s: torch.randn(*s, dtype=torch.bfloat16) * 1.6)(Dm, H, Dh) * Dm ** (-0.5)), 'Wv': _w((lambda *s: torch.randn(*s, dtype=torch.bfloat16) * 0.2)(Dm, H, Dh) * Dm ** (-0.5)), 'Wo': _w((lambda *s: torch.randn(*s, dtype=torch.bfloat16) * 0.2)(H, Dh, Dm) * (H * Dh) ** (-0.5)), 'seg_len': seg}
    _A_in = _A_setup()

    def _B_setup():
        B, S, D, F = (1, 2048, 640, 1536)
        return {'x': _w((lambda *s: torch.randn(*s, dtype=torch.bfloat16) * 0.05)(B, S, D)), 'W_gate': _w((lambda *s: torch.randn(*s, dtype=torch.bfloat16) * 0.2)(D, F) * (2.0 / D) ** 0.5), 'W_up': _w((lambda *s: torch.randn(*s, dtype=torch.bfloat16) * 0.2)(D, F) * (2.0 / D) ** 0.5), 'W_down': _w((lambda *s: torch.randn(*s, dtype=torch.bfloat16) * 0.2)(F, D) * (1.0 / F) ** 0.5)}
    _B_in = _B_setup()
    return {'A_x': _A_in['x'], 'A_mem0': _A_in['mem0'], 'A_Wq': _A_in['Wq'], 'A_Wk': _A_in['Wk'], 'A_Wv': _A_in['Wv'], 'A_Wo': _A_in['Wo'], 'A_seg_len': _A_in['seg_len'], 'B_x': _B_in['x'], 'B_W_gate': _B_in['W_gate'], 'B_W_up': _B_in['W_up'], 'B_W_down': _B_in['W_down']}

def reference(A_x, A_mem0, A_Wq, A_Wk, A_Wv, A_Wo, A_seg_len, B_x, B_W_gate, B_W_up, B_W_down):

    def _A_ref(x, mem0, Wq, Wk, Wv, Wo, seg_len):
        B, S, Dm = x.shape
        H, Dh = (Wq.shape[1], Wq.shape[2])
        M = mem0.shape[1]
        scale = Dh ** (-0.5)
        n_seg = S // seg_len
        L = M + seg_len
        idx = torch.arange(L)
        mask = (idx[:, None] < M) | (idx[:, None] >= idx[None, :])
        mem = mem0
        outs = []
        for s in range(n_seg):
            xs = x[:, s * seg_len:(s + 1) * seg_len, :].clone()
            h = torch.concatenate([mem, xs], axis=1)
            q = torch.einsum('btd,dhe->bhte', h, Wq)
            k = torch.einsum('btd,dhe->bhte', h, Wk)
            v = torch.einsum('btd,dhe->bhte', h, Wv)
            scores = torch.einsum('bhqe,bhke->bhqk', q, k) * scale
            scores = torch.where(mask[None, None], scores, -1000000000.0)
            p = _softmax(scores, axis=-1)
            o = torch.einsum('bhqk,bhke->bhqe', p, v)
            o = torch.einsum('bhte,hed->btd', o, Wo)
            mem = o[:, :M, :].clone()
            outs.append(o[:, M:, :])
        return torch.concatenate(outs, axis=1)

    def _B_ref(x, W_gate, W_up, W_down):
        gate = torch.einsum('bsd,df->bsf', x, W_gate)
        up = torch.einsum('bsd,df->bsf', x, W_up)
        gate = gate * (lambda x, dt: x.to(dt))(gate > 0, gate.dtype)
        h = gate * up
        return torch.einsum('bsf,fd->bsd', h, W_down)
    x = A_x
    xn = _layernorm(x, axis=-1)
    return x + _A_ref(xn, A_mem0, A_Wq, A_Wk, A_Wv, A_Wo, A_seg_len) + _B_ref(xn, B_W_gate, B_W_up, B_W_down)
```

```python
class Asm:
    def __init__(self):
        self.lines = []
        self.uid = 0
    def __call__(self, s):
        for l in s.strip().split("\n"):
            self.lines.append("    " + l.strip())
    def label(self, l):
        self.lines.append(l + ":")
    def newlabel(self, p="L"):
        self.uid += 1
        return f"{p}_{self.uid}"
    def raw(self, s):
        self.lines.append(s)
    def text(self):
        return "\n".join(self.lines) + "\n"

def vr(b, n=1):
    return f"v{b}" if n == 1 else f"v[{b}:{b+n-1}]"
def ar(b, n=1):
    return f"a{b}" if n == 1 else f"a[{b}:{b+n-1}]"
def sr(b, n=1):
    return f"s{b}" if n == 1 else f"s[{b}:{b+n-1}]"

KARG = dict(A_x=0, A_mem0=8, A_Wq=16, A_Wk=24, A_Wv=32, A_Wo=40, A_seg_len=48, B_x=56, B_W_gate=64, B_W_up=72, B_W_down=80, out=88, dbg=96, ws=104)

def kernel_begin(a, name):
    a.raw(".text")
    a.raw(f".globl {name}")
    a.raw(".p2align 8")
    a.raw(f".type {name},@function")
    a.label(name)

def kernel_desc(a, name, vgpr, sgpr=102, accum=None):
    if accum is None: accum = (vgpr + 3) // 4 * 4
    a.raw('.section .rodata,"a"')
    a.raw(".p2align 6")
    a.raw(f".amdhsa_kernel {name}")
    a.raw(f"  .amdhsa_next_free_vgpr {vgpr}")
    a.raw(f"  .amdhsa_next_free_sgpr {sgpr}")
    a.raw(f"  .amdhsa_accum_offset {accum}")
    a.raw("  .amdhsa_group_segment_fixed_size 0")
    a.raw("  .amdhsa_kernarg_size 112")
    a.raw("  .amdhsa_user_sgpr_count 2")
    a.raw("  .amdhsa_user_sgpr_kernarg_segment_ptr 1")
    a.raw("  .amdhsa_system_sgpr_workgroup_id_x 1")
    a.raw(".end_amdhsa_kernel")

def make_srd(a, sd, sbase, nbytes, add=0):
    if add:
        a(f"s_add_u32 s{sd}, s{sbase}, {add & 0xffffffff}")
        a(f"s_addc_u32 s{sd+1}, s{sbase+1}, {add >> 32}")
    else:
        a(f"s_mov_b32 s{sd}, s{sbase}")
        a(f"s_mov_b32 s{sd+1}, s{sbase+1}")
    a(f"s_mov_b32 s{sd+2}, {nbytes}")
    a(f"s_mov_b32 s{sd+3}, 0x00020000")
```

```python
from asmlib import *
import layout as L

NQK = 32
NO = L.NO
SPIN_MAX = 1 << 21

LQ_MEM = 0
LQ_Q = 10240
LQ_K = LQ_Q + 3200
LQ_W = 16640
LQ_STG = 131328
LQ_STG_STRIDE = 800
LO_MEM = 0
LO_P = 10240
LO_UT = 30720
LO_RED = 34816
LDS_BYTES = 156928

class LgkmTracker:
    def __init__(s, a): s.a = a; s.issued = 0; s.done = 0; s.ids = {}
    def issue(s, key, text):
        s.a(text); s.issued += 1; s.ids[key] = s.issued
    def need(s, key):
        n = s.ids[key]
        if n > s.done:
            out = s.issued - n
            assert out <= 15
            s.a(f"s_waitcnt lgkmcnt({out})"); s.done = n
    def drain(s):
        if s.done < s.issued: s.a("s_waitcnt lgkmcnt(0)"); s.done = s.issued

def gather(a, tag, srd, soff, voffs, stg, ldsaddrs, s_spin=40):
    n = len(voffs)
    top = a.newlabel(tag + "_poll"); ok = a.newlabel(tag + "_ok")
    a(f"s_mov_b32 s{s_spin}, 0")
    a.label(top)
    for i, (v, imm) in enumerate(voffs):
        a(f"buffer_load_dwordx4 {vr(stg+4*i,4)}, v{v}, {sr(srd,4)}, s{soff} offen offset:{imm} sc1")
    a("s_waitcnt vmcnt(0)")
    t = 2
    a(f"v_max3_u32 v{t}, v{stg}, v{stg+1}, v{stg+2}")
    regs = [stg + k for k in range(3, 4 * n)]
    while regs:
        if len(regs) >= 2:
            a(f"v_max3_u32 v{t}, v{t}, v{regs[0]}, v{regs[1]}"); regs = regs[2:]
        else:
            a(f"v_max_u32 v{t}, v{t}, v{regs[0]}"); regs = regs[1:]
    a(f"v_cmp_eq_u32 vcc, -1, v{t}")
    a(f"s_cbranch_vccz {ok}")
    a(f"s_add_u32 s{s_spin}, s{s_spin}, 1")
    a(f"s_cmp_lt_u32 s{s_spin}, {SPIN_MAX}")
    a(f"s_cbranch_scc1 {top}")
    a("s_branch chain_fail")
    a.label(ok)
    for i, (v, imm) in enumerate(ldsaddrs):
        a(f"ds_write_b128 v{v}, {vr(stg+4*i,4)} offset:{imm}")

def mem_gather(a, tag, stg, lds_base):
    gather(a, tag, 8, 41, [(4, 0), (4, 4096 - 0), (5, 0)] if False else [(4, 0), (6, 0), (5, 0)], stg,
           [(4, lds_base), (6, lds_base), (5, lds_base)])

def common_setup(a):
    a(f"s_load_dwordx2 s[4:5], s[0:1], {KARG['ws']}")
    a(f"s_load_dwordx4 s[32:35], s[0:1], {KARG['A_Wq']}")
    a(f"s_load_dwordx2 s[36:37], s[0:1], {KARG['dbg']}")
    a("v_and_b32 v1, 63, v0")
    a("v_lshlrev_b32 v4, 4, v0")
    a("v_add_u32 v6, 4096, v4")
    a("v_and_b32 v5, 127, v0")
    a("v_lshlrev_b32 v5, 4, v5")
    a("v_add_u32 v5, 8192, v5")
    a("v_readfirstlane_b32 s38, v0")
    a("s_waitcnt lgkmcnt(0)")
    a("s_lshr_b32 s38, s38, 6")
    make_srd(a, 8, 4, (L.NSEG + 1) * 10240, L.MEMB)
    make_srd(a, 12, 4, L.NSEG * 20480, L.PB)

QW_V0 = 144
def qk_wloc(f):
    if f % 4 == 3 and f < 112: return ("lds", f // 4)
    idx = f - (min(f, 112) + 1) // 4 if f < 112 else f - 28
    idx = sum(1 for g in range(f) if not (g % 4 == 3 and g < 112))
    if idx < 64: return ("reg", ar(4 * idx, 4))
    return ("reg", vr(QW_V0 + 4 * (idx - 64), 4))

def gen_qk(a):
    a.label("qk_role")
    make_srd(a, 16, 32, L.D * L.HD * 2)
    make_srd(a, 20, 34, L.D * L.HD * 2)
    make_srd(a, 24, 4, L.S * L.HD * 2, L.KX)
    make_srd(a, 28, 4, L.NSEG * 8 * L.HD * 2, L.KM)
    a("v_lshrrev_b32 v7, 3, v0")
    a("v_and_b32 v8, 7, v0")
    a(f"s_mov_b32 s42, {L.HD*2}")
    a("v_mul_lo_u32 v9, v7, s42")
    a("v_lshl_add_u32 v9, v8, 4, v9")
    a(f"v_mul_u32_u24 v10, {LQ_STG_STRIDE}, v7")
    a("v_lshl_add_u32 v10, v8, 4, v10")
    a(f"v_add_u32 v10, {LQ_STG}, v10")
    a("v_and_b32 v11, 15, v1")
    a("v_lshrrev_b32 v12, 4, v1")
    a("v_lshrrev_b32 v13, 2, v11")
    a("v_lshl_add_u32 v13, v12, 3, v13")
    a(f"v_mul_u32_u24 v13, {LQ_STG_STRIDE}, v13")
    a("v_and_b32 v14, 3, v11")
    a("v_lshl_add_u32 v13, v14, 3, v13")
    a("s_mul_i32 s42, s38, 192")
    a(f"s_add_u32 s42, s42, {LQ_STG}")
    a("v_add_u32 v13, s42, v13")
    a("s_mul_i32 s42, s38, 28672")
    a(f"s_add_u32 s42, s42, {LQ_W}")
    a("v_lshlrev_b32 v14, 4, v1")
    a("v_add_u32 v14, s42, v14")
    a(f"s_mul_i32 s41, s2, {192*2}")
    for ks in range(20):
        for j in range(6):
            srd = 16 if j < 3 else 20
            a(f"buffer_load_dwordx4 {vr(16+4*j,4)}, v9, {sr(srd,4)}, s41 offen offset:{128*(j%3)}")
        a(f"s_add_u32 s41, s41, {32*L.HD*2}")
        a("s_waitcnt vmcnt(0)")
        a("s_barrier")
        for j in range(6):
            a(f"ds_write_b128 v10, {vr(16+4*j,4)} offset:{128*j}")
        a("s_waitcnt lgkmcnt(0)")
        a("s_barrier")
        for nt in range(6):
            f = ks * 6 + nt
            kind, loc = qk_wloc(f)
            if kind == "reg":
                base = int(loc.split("[")[1].split(":")[0]); p = loc[0]
                a(f"ds_read_b64_tr_b16 {p}[{base}:{base+1}], v13 offset:{32*nt}")
                a(f"ds_read_b64_tr_b16 {p}[{base+2}:{base+3}], v13 offset:{32*nt+4*LQ_STG_STRIDE}")
            else:
                a(f"ds_read_b64_tr_b16 v[40:41], v13 offset:{32*nt}")
                a(f"ds_read_b64_tr_b16 v[42:43], v13 offset:{32*nt+4*LQ_STG_STRIDE}")
                a("s_waitcnt lgkmcnt(0)")
                a(f"ds_write_b128 v14, v[40:43] offset:{1024*loc}")
        a("s_waitcnt lgkmcnt(0)")
    a("s_barrier")
    a("v_lshrrev_b32 v12, 4, v1")
    a("v_and_b32 v11, 7, v1")
    a("v_lshlrev_b32 v7, 7, v12")
    a("v_lshl_add_u32 v7, v11, 4, v7")
    a(f"v_add_u32 v7, {LQ_MEM}, v7")
    a("v_mul_u32_u24 v8, 400, v11")
    a("v_lshl_add_u32 v8, v12, 3, v8")
    a("s_and_b32 s42, s38, 1")
    a("s_mul_i32 s42, s42, 192")
    a("s_lshr_b32 s43, s38, 1")
    a("s_mul_i32 s43, s43, 3200")
    a("s_add_u32 s42, s42, s43")
    a(f"s_add_u32 s42, s42, {LQ_Q}")
    a("v_add_u32 v8, s42, v8")
    a("v_mul_u32_u24 v9, 400, v11")
    a("v_lshl_add_u32 v9, v12, 4, v9")
    a(f"v_add_u32 v9, {LQ_Q}, v9")
    a(f"v_mul_u32_u24 v10, {L.HD*2}, v11")
    a("v_lshl_add_u32 v10, v12, 3, v10")
    a("s_mul_i32 s42, s2, 384")
    a("s_and_b32 s43, s38, 1")
    a("s_mul_i32 s43, s43, 192")
    a("s_add_u32 s42, s42, s43")
    a("v_add_u32 v10, s42, v10")
    a("v_and_b32 v13, 8, v1")
    a("v_cmp_eq_u32 vcc, 0, v13")
    a("v_mov_b32 v13, 0x7fffffff")
    a("s_nop 1")
    a("v_cndmask_b32 v10, v13, v10, vcc")
    a("v_and_b32 v15, 15, v1")
    a(f"v_mul_u32_u24 v11, {L.HD*2}, v15")
    a("v_lshl_add_u32 v11, v12, 4, v11")
    a("s_mul_i32 s42, s2, 384")
    a("v_add_u32 v11, s42, v11")
    a(f"v_add_u32 v15, {16*L.HD*2}, v11")
    a("v_and_b32 v3, 7, v1")
    a("v_mul_u32_u24 v3, 80, v3")
    a("s_mul_i32 s42, s2, 640")
    a("v_add_u32 v3, s42, v3")
    a("v_lshl_add_u32 v13, v12, 4, v3")
    a("v_add_u32 v13, 16, v13")
    a("v_lshl_add_u32 v3, v12, 3, v3")
    a("v_mov_b32 v2, 0x7fffffff")
    a("v_cndmask_b32 v13, v2, v13, vcc")
    a("v_and_b32 v116, 0x28, v1")
    a("v_cmp_eq_u32 vcc, 0, v116")
    a("s_nop 1")
    a("v_cndmask_b32 v3, v2, v3, vcc")
    a("s_mov_b32 s3, 0")
    a("s_mov_b32 s41, 0")
    a("s_mov_b32 s44, 0")
    a("s_mov_b32 s45, 0")
    a("s_mov_b32 s46, 0")
    def kx_prefetch():
        for t in range(2):
            for ks in range(6):
                a(f"buffer_load_dwordx4 {vr(68+4*(t*6+ks),4)}, v{11 if t==0 else 15}, s[24:27], s44 offen offset:{64*ks}")
    a("s_cmp_lg_u32 s38, 0")
    a("s_cbranch_scc1 qk_loop")
    kx_prefetch()
    a.label("qk_loop")
    mem_gather(a, "qk", 116, LQ_MEM)
    a("s_waitcnt lgkmcnt(0)")
    a("s_barrier")
    tr = LgkmTracker(a)
    def aread(ks):
        tr.issue(("A", ks), f"ds_read_b128 {vr(40+4*(ks%3),4)}, v7 offset:{512*ks}")
    def wread(q):
        tr.issue(("W", q), f"ds_read_b128 {vr(52+4*(q%4),4)}, v14 offset:{1024*q}")
    aread(0); aread(1); wread(0); wread(1); wread(2)
    nextw = 3
    for ks in range(20):
        if ks + 2 < 20: aread(ks + 2)
        tr.need(("A", ks))
        for nt in range(6):
            f = ks * 6 + nt
            kind, loc = qk_wloc(f)
            if kind == "lds":
                tr.need(("W", loc)); w = vr(52 + 4 * (loc % 4), 4)
            else: w = loc
            d = vr(16 + 4 * nt, 4)
            c = "0" if ks == 0 else d
            a(f"v_mfma_f32_16x16x32_bf16 {d}, {w}, {vr(40+4*(ks%3),4)}, {c}")
            if kind == "lds" and nextw < 28:
                wread(nextw); nextw += 1
    tr.drain()
    a("s_nop 7")
    for nt in range(6):
        a(f"v_cvt_pk_bf16_f32 v{116+2*nt}, v{16+4*nt}, v{17+4*nt}")
        a(f"v_cvt_pk_bf16_f32 v{117+2*nt}, v{18+4*nt}, v{19+4*nt}")
        a(f"ds_write_b64 v8, {vr(116+2*nt,2)} offset:{32*nt}")
    a("s_cmp_lt_u32 s38, 2")
    a("s_cbranch_scc1 qk_nokm")
    for nt in range(6):
        a(f"buffer_store_dwordx2 {vr(116+2*nt,2)}, v10, s[28:31], s45 offen offset:{32*nt}")
    a.label("qk_nokm")
    a("s_waitcnt lgkmcnt(0)")
    a("s_barrier")
    a("s_cmp_lg_u32 s38, 0")
    a("s_cbranch_scc1 qk_next")
    qf = [28 + 4 * k for k in range(6)]
    kf = [52, 56, 60, 64, 116, 120]
    for ks in range(6):
        a(f"ds_read_b128 {vr(qf[ks],4)}, v9 offset:{64*ks}")
        a(f"ds_read_b128 {vr(kf[ks],4)}, v9 offset:{3200+64*ks}")
    a("s_waitcnt vmcnt(0)")
    for ks in range(6):
        a(f"s_waitcnt lgkmcnt({10-2*ks})")
        for t in range(3):
            d = vr(16 + 4 * t, 4); c = "0" if ks == 0 else d
            kfr = vr(kf[ks], 4) if t == 0 else vr(68 + 4 * ((t - 1) * 6 + ks), 4)
            a(f"v_mfma_f32_16x16x32_bf16 {d}, {kfr}, {vr(qf[ks],4)}, {c}")
    a(f"s_add_u32 s44, s44, {32*L.HD*2}")
    a("s_nop 7")
    kx_prefetch()
    a("s_mov_b32 s42, 0x3d93cd3a")
    for i in range(0, 12, 2):
        a(f"v_cvt_pk_bf16_f32 v2, v{16+i}, v{17+i}")
        a(f"v_lshlrev_b32 v{16+i}, 16, v2")
        a(f"v_and_b32 v{17+i}, 0xffff0000, v2")
        a(f"v_mul_f32 v{16+i}, s42, v{16+i}")
        a(f"v_mul_f32 v{17+i}, s42, v{17+i}")
        a(f"v_cvt_pk_bf16_f32 v2, v{16+i}, v{17+i}")
        a(f"v_lshlrev_b32 v{16+i}, 16, v2")
        a(f"v_and_b32 v{17+i}, 0xffff0000, v2")
    a("v_cmp_gt_u32 vcc, 32, v1")
    a("v_mov_b32 v2, 0xff800000")
    a("s_nop 1")
    for i in range(4): a(f"v_cndmask_b32 v{16+i}, v2, v{16+i}, vcc")
    a("v_max3_f32 v28, v16, v17, v18")
    for i in range(19, 27, 2): a(f"v_max3_f32 v28, v28, v{i}, v{i+1}")
    a("v_max_f32 v28, v28, v27")
    def xlane(op, r):
        a(f"v_mov_b32 v29, v{r}")
        a("s_nop 1")
        a(f"v_permlane32_swap_b32 v{r}, v29")
        a("s_nop 1")
        a(f"{op} v{r}, v{r}, v29")
        a(f"v_mov_b32 v29, v{r}")
        a("s_nop 1")
        a(f"v_permlane16_swap_b32 v{r}, v29")
        a("s_nop 1")
        a(f"{op} v{r}, v{r}, v29")
    xlane("v_max_f32", 28)
    a("s_mov_b32 s42, 0x3fb8aa3b")
    for i in range(12):
        a(f"v_sub_f32 v{16+i}, v{16+i}, v28")
        a(f"v_mul_f32 v{16+i}, s42, v{16+i}")
        a(f"v_exp_f32 v{16+i}, v{16+i}")
    a("s_nop 0")
    a("v_add_f32 v30, v16, v17")
    for i in range(18, 28): a(f"v_add_f32 v30, v30, v{i}")
    xlane("v_add_f32", 30)
    a("v_rcp_f32 v30, v30")
    a("s_nop 0")
    for i in range(12): a(f"v_mul_f32 v{16+i}, v{16+i}, v30")
    for i in range(6):
        a(f"v_cvt_pk_bf16_f32 v{32+i}, v{16+2*i}, v{17+2*i}")
        a(f"v_min_u32 v{32+i}, -2, v{32+i}")
    a("s_nop 1")
    a("v_permlane32_swap_b32 v34, v36")
    a("v_permlane32_swap_b32 v35, v37")
    a("s_nop 1")
    a("v_permlane16_swap_b32 v34, v36")
    a("v_permlane16_swap_b32 v35, v37")
    a("buffer_store_dwordx4 v[34:37], v13, s[12:15], s46 offen sc1")
    a("buffer_store_dwordx2 v[32:33], v3, s[12:15], s46 offen sc1")
    a.label("qk_next")
    a("s_add_u32 s3, s3, 1")
    a("s_add_u32 s41, s41, 10240")
    a(f"s_add_u32 s45, s45, {8*L.HD*2}")
    a("s_add_u32 s46, s46, 20480")
    a(f"s_cmp_lt_u32 s3, {L.NSEG}")
    a("s_cbranch_scc1 qk_loop")
    a("s_endpgm")

def o_wloc(f):
    if f < 64: return ar(4 * f, 4)
    return vr(192 + 4 * (f - 64), 4)

def gen_o(a):
    a.label("o_role")
    a(f"s_sub_u32 s2, s2, {NQK}")
    make_srd(a, 16, 4, L.H * L.D * L.D * 2, L.BT)
    make_srd(a, 20, 4, L.NSEG * L.H * L.D * 64, L.UX)
    make_srd(a, 24, 4, L.NSEG * L.H * L.D * 16, L.UM)
    a("v_and_b32 v11, 15, v1")
    a("v_lshrrev_b32 v12, 4, v1")
    a("v_and_b32 v13, 7, v1")
    a("v_lshrrev_b32 v14, 3, v11")
    a("v_mul_u32_u24 v14, 640, v14")
    a("v_add_u32 v14, v14, v13")
    a("s_mul_i32 s42, s38, 5120")
    a("s_lshl_b32 s43, s2, 3")
    a("s_add_u32 s42, s42, s43")
    a("v_add_u32 v14, s42, v14")
    a("v_mul_u32_u24 v14, 1280, v14")
    a("v_lshl_add_u32 v14, v12, 4, v14")
    for nt in range(4):
        for ks in range(20):
            f = ks * 4 + nt
            a(f"buffer_load_dwordx4 {o_wloc(f)}, v14, s[16:19], 0 offen offset:{64*ks}")
        if nt < 3: a(f"v_add_u32 v14, {2*640*1280}, v14")
    a("v_lshlrev_b32 v7, 7, v12")
    a("v_lshl_add_u32 v7, v13, 4, v7")
    a(f"v_add_u32 v7, {LO_MEM}, v7")
    a("v_lshlrev_b32 v8, 4, v11")
    a("v_lshl_add_u32 v8, v12, 3, v8")
    a("s_lshl_b32 s42, s38, 10")
    a(f"s_add_u32 s42, s42, {LO_UT}")
    a("v_add_u32 v8, s42, v8")
    a("v_cmp_gt_u32 vcc, 32, v1")
    a(f"v_mov_b32 v2, {LO_RED+1024}")
    a("s_nop 1")
    a("v_cndmask_b32 v8, v2, v8, vcc")
    a("v_lshl_add_u32 v9, v12, 3, v13")
    a("v_lshlrev_b32 v9, 4, v9")
    a("v_add_u32 v9, s42, v9")
    a("v_mul_u32_u24 v10, 640, v12")
    a("v_add_u32 v10, v10, v13")
    a("s_mul_i32 s42, s38, 5120")
    a("s_lshl_b32 s43, s2, 3")
    a("s_add_u32 s42, s42, s43")
    a("v_add_u32 v10, s42, v10")
    a("v_lshlrev_b32 v10, 4, v10")
    a("v_and_b32 v2, 8, v1")
    a("v_cmp_eq_u32 vcc, 0, v2")
    a("v_mov_b32 v2, 0x7fffffff")
    a("s_nop 1")
    a("v_cndmask_b32 v10, v2, v10, vcc")
    a("v_add_u32 v14, s42, v13")
    a("v_lshlrev_b32 v14, 6, v14")
    a("v_lshl_add_u32 v14, v12, 4, v14")
    a("v_mul_u32_u24 v3, 80, v13")
    a("s_mul_i32 s42, s38, 5120")
    a(f"s_add_u32 s42, s42, {LO_P}")
    a("v_add_u32 v3, s42, v3")
    a("v_lshl_add_u32 v15, v12, 4, v3")
    a("v_add_u32 v15, 16, v15")
    a("v_mul_u32_u24 v2, 640, v12")
    a("v_add_u32 v3, v2, v3")
    a("v_lshlrev_b32 v160, 7, v12")
    a("v_lshl_add_u32 v160, v13, 2, v160")
    a("s_lshl_b32 s42, s38, 8")
    a(f"s_add_u32 s42, s42, {LO_RED}")
    a("v_add_u32 v160, s42, v160")
    a("v_and_b32 v2, 0x28, v1")
    a("v_cmp_eq_u32 vcc, 0, v2")
    a(f"v_mov_b32 v2, {LO_RED+1024}")
    a("s_nop 1")
    a("v_cndmask_b32 v160, v2, v160, vcc")
    a("v_lshlrev_b32 v161, 3, v1")
    a("v_and_b32 v161, 0xff, v161")
    a(f"v_add_u32 v161, {LO_RED}, v161")
    a("v_lshlrev_b32 v162, 2, v1")
    a("s_lshl_b32 s42, s2, 7")
    a("v_add_u32 v162, s42, v162")
    a("v_cmp_gt_u32 vcc, 32, v1")
    a("v_mov_b32 v2, 0x7fffffff")
    a("s_nop 1")
    a("v_cndmask_b32 v162, v2, v162, vcc")
    for i in range(1, 5): a(f"v_add_u32 v{163+i}, {4096*i}, v4")
    a("s_mov_b32 s3, 0")
    a("s_mov_b32 s41, 0")
    a("s_mov_b32 s44, 0")
    a("s_mov_b32 s45, 0")
    a("s_mov_b32 s46, 0")
    a("s_mov_b32 s47, 10240")
    def ux_prefetch():
        for i in range(8):
            if i > 0: a(f"v_add_u32 v2, {640*64*i}, v14")
            a(f"buffer_load_dwordx4 {vr(72+4*i,4)}, v{14 if i==0 else 2}, s[20:23], s44 offen")
    ux_prefetch()
    a("s_waitcnt vmcnt(0)")
    a.label("o_loop")
    mem_gather(a, "om", 52, LO_MEM)
    a("s_waitcnt lgkmcnt(0)")
    a("s_barrier")
    tr = LgkmTracker(a)
    def aread(ks):
        tr.issue(("A", ks), f"ds_read_b128 {vr(40+4*(ks%3),4)}, v7 offset:{512*ks}")
    aread(0); aread(1)
    for ks in range(20):
        if ks + 2 < 20: aread(ks + 2)
        tr.need(("A", ks))
        for nt in range(4):
            d = vr(16 + 4 * nt, 4); c = "0" if ks == 0 else d
            a(f"v_mfma_f32_16x16x32_bf16 {d}, {vr(40+4*(ks%3),4)}, {o_wloc(ks*4+nt)}, {c}")
    tr.drain()
    a("s_nop 7")
    for nt in range(4):
        a(f"v_cvt_pk_bf16_f32 v{52+2*nt}, v{16+4*nt}, v{17+4*nt}")
        a(f"v_cvt_pk_bf16_f32 v{53+2*nt}, v{18+4*nt}, v{19+4*nt}")
        a(f"ds_write_b64 v8, {vr(52+2*nt,2)} offset:{256*nt}")
    a("s_waitcnt lgkmcnt(0)")
    for i in range(2):
        a(f"ds_read_b128 {vr(104+4*i,4)}, v9 offset:{512*i}")
    a("s_waitcnt lgkmcnt(0)")
    for i in range(2):
        a(f"buffer_store_dwordx4 {vr(104+4*i,4)}, v10, s[24:27], s45 offen offset:0" if i == 0 else "")
    a(f"v_add_u32 v2, {4*640*16}, v10")
    a(f"buffer_store_dwordx4 {vr(108,4)}, v2, s[24:27], s45 offen")
    gather(a, "op", 12, 46, [(4, 0)] + [(163 + i, 0) for i in range(1, 5)], 52,
           [(4, LO_P)] + [(163 + i, LO_P) for i in range(1, 5)])
    a("s_waitcnt lgkmcnt(0)")
    a("s_barrier")
    for i in range(8):
        a(f"ds_read_b128 {vr(112+4*i,4)}, v15 offset:{640*i}")
    for i in range(2):
        a(f"ds_read_b128 {vr(144+4*i,4)}, v3 offset:{2560*i}")
    for i in range(10):
        a(f"s_waitcnt lgkmcnt({9-i})")
        b = vr(72 + 4 * i, 4) if i < 8 else vr(104 + 4 * (i - 8), 4)
        c = "0" if i == 0 else "v[152:155]"
        a(f"v_mfma_f32_16x16x32_bf16 v[152:155], {vr(112+4*i,4)}, {b}, {c}")
    a(f"s_add_u32 s44, s44, {L.H*L.D*64}")
    a("s_nop 7")
    for jj in range(4):
        a(f"ds_write_b32 v160, v{152+jj} offset:{32*jj}")
    ux_prefetch()
    a("s_waitcnt lgkmcnt(0)")
    a("s_barrier")
    a("s_cmp_lg_u32 s38, 0")
    a("s_cbranch_scc1 o_next")
    for w in range(4):
        a(f"ds_read_b64 {vr(52+2*w,2)}, v161 offset:{256*w}")
    a("s_waitcnt lgkmcnt(0)")
    a("v_add_f32 v52, v52, v54")
    a("v_add_f32 v53, v53, v55")
    a("v_add_f32 v56, v56, v58")
    a("v_add_f32 v57, v57, v59")
    a("v_add_f32 v52, v52, v56")
    a("v_add_f32 v53, v53, v57")
    a("v_cvt_pk_bf16_f32 v52, v52, v53")
    a("v_min_u32 v52, -2, v52")
    a("buffer_store_dword v52, v162, s[8:11], s47 offen sc1")
    a.label("o_next")
    a("s_add_u32 s3, s3, 1")
    a("s_add_u32 s41, s41, 10240")
    a("s_add_u32 s47, s47, 10240")
    a(f"s_add_u32 s45, s45, {L.H*L.D*16}")
    a("s_add_u32 s46, s46, 20480")
    a(f"s_cmp_lt_u32 s3, {L.NSEG}")
    a("s_cbranch_scc1 o_loop")
    a("s_endpgm")

def gen_chain(a, name="chain_kernel"):
    kernel_begin(a, name)
    a(f"s_cmp_ge_u32 s2, {NQK+NO}")
    a("s_cbranch_scc1 chain_end")
    common_setup(a)
    a(f"s_cmp_ge_u32 s2, {NQK}")
    a("s_cbranch_scc1 o_role")
    gen_qk(a)
    gen_o(a)
    a.label("chain_fail")
    make_srd(a, 48, 36, 256)
    a("v_mov_b32 v2, 0xdead")
    a("v_mov_b32 v3, 0")
    a("buffer_store_dword v2, v3, s[48:51], 0 offen")
    a.label("chain_end")
    a("s_endpgm")
    kernel_desc(a, name, 512, 56, 256)
    return LDS_BYTES
```

```python
from asmlib import *
import layout as L
import struct

def bf16_round(x):
    u = struct.unpack('<I', struct.pack('<f', x))[0]
    u = (u + 0x7fff + ((u >> 16) & 1)) & 0xffff0000
    return u

def gen_final(a, name="final_kernel"):
    kernel_begin(a, name)
    a("s_cmp_ge_u32 s2, 256")
    a(f"s_cbranch_scc1 {name}_end")
    a(f"s_load_dwordx2 s[4:5], s[0:1], {KARG['ws']}")
    a(f"s_load_dwordx2 s[6:7], s[0:1], {KARG['A_x']}")
    a(f"s_load_dwordx2 s[36:37], s[0:1], {KARG['out']}")
    a("v_and_b32 v1, 63, v0")
    a("v_readfirstlane_b32 s38, v0")
    a("s_lshr_b32 s3, s2, 2")
    a("s_and_b32 s2, s2, 3")
    a("s_waitcnt lgkmcnt(0)")
    a("s_lshr_b32 s38, s38, 6")
    make_srd(a, 8, 4, L.S * L.HD * 2, L.QX)
    make_srd(a, 12, 4, L.S * L.HD * 2, L.KX)
    make_srd(a, 16, 4, L.NSEG * 8 * L.HD * 2, L.KM)
    make_srd(a, 20, 4, L.NSEG * L.H * L.D * 64, L.UX)
    make_srd(a, 24, 4, L.NSEG * L.H * L.D * 16, L.UM)
    make_srd(a, 28, 6, L.S * L.D * 2)
    make_srd(a, 40, 4, L.S * L.D * 2, L.DOWN)
    make_srd(a, 44, 36, L.S * L.D * 2)
    a("v_and_b32 v2, 15, v1")
    a("v_lshrrev_b32 v3, 4, v1")
    a("v_and_b32 v4, 7, v1")
    a(f"v_mul_u32_u24 v5, {L.HD*2}, v2")
    a("v_lshl_add_u32 v5, v3, 4, v5")
    a(f"v_add_u32 v6, {16*L.HD*2}, v5")
    a(f"v_mul_u32_u24 v7, {L.HD*2}, v4")
    a("v_lshl_add_u32 v7, v3, 4, v7")
    a(f"s_mul_i32 s48, s3, {32*L.HD*2}")
    a(f"s_mul_i32 s49, s3, {8*L.HD*2}")
    a("s_mul_i32 s50, s38, 3072")
    a("s_add_u32 s48, s48, s50")
    a("s_add_u32 s49, s49, s50")
    a("v_lshlrev_b32 v8, 2, v3")
    a("v_sub_u32 v8, v2, v8")
    a("v_mul_u32_u24 v10, 80, v2")
    a("s_mul_i32 s50, s38, 20480")
    a("v_add_u32 v10, s50, v10")
    a("v_lshl_add_u32 v9, v3, 4, v10")
    a("v_add_u32 v9, 16, v9")
    a("v_lshl_add_u32 v10, v3, 3, v10")
    a("v_cmp_gt_u32 vcc, 32, v1")
    a("v_mov_b32 v11, 90112")
    a("s_nop 1")
    a("v_cndmask_b32 v10, v11, v10, vcc")
    def fr(st, idx):
        return vr(64 + 4 * idx, 4) if st == 0 else ar(4 * idx, 4)
    def loads(st):
        for qt in range(2):
            for ks in range(6):
                a(f"buffer_load_dwordx4 {fr(st, qt*6+ks)}, v{5+qt}, s[8:11], s48 offen offset:{64*ks}")
        for t in range(2):
            for ks in range(6):
                a(f"buffer_load_dwordx4 {fr(st, 12+t*6+ks)}, v{5+t}, s[12:15], s48 offen offset:{64*ks}")
        for ks in range(6):
            a(f"buffer_load_dwordx4 {fr(st, 24+ks)}, v7, s[16:19], s49 offen offset:{64*ks}")
        a("s_add_u32 s48, s48, 384")
        a("s_add_u32 s49, s49, 384")
    NEG = bf16_round(-1e9)
    loads(0)
    for hh in range(8):
        st = hh & 1
        if hh < 7:
            loads(1 - st); a("s_waitcnt vmcnt(30)")
        else: a("s_waitcnt vmcnt(0)")
        for ks in range(6):
            for qt in range(2):
                for t in range(3):
                    if qt == 0 and t == 2: continue
                    d = vr(16 + 4 * (qt * 3 + t), 4); c = "0" if ks == 0 else d
                    kfr = fr(st, 24 + ks) if t == 0 else fr(st, 12 + (t - 1) * 6 + ks)
                    a(f"v_mfma_f32_16x16x32_bf16 {d}, {kfr}, {fr(st, qt*6+ks)}, {c}")
        a("s_nop 7")
        for qt in range(2):
            b = 16 + 12 * qt
            a("s_mov_b32 s42, 0x3d93cd3a")
            nv = 8 if qt == 0 else 12
            for i in range(0, nv, 2):
                a(f"v_cvt_pk_bf16_f32 v40, v{b+i}, v{b+i+1}")
                a(f"v_lshlrev_b32 v{b+i}, 16, v40")
                a(f"v_and_b32 v{b+i+1}, 0xffff0000, v40")
                a(f"v_mul_f32 v{b+i}, s42, v{b+i}")
                a(f"v_mul_f32 v{b+i+1}, s42, v{b+i+1}")
                a(f"v_cvt_pk_bf16_f32 v40, v{b+i}, v{b+i+1}")
                a(f"v_lshlrev_b32 v{b+i}, 16, v40")
                a(f"v_and_b32 v{b+i+1}, 0xffff0000, v40")
            a("v_cmp_gt_u32 vcc, 32, v1")
            a("v_mov_b32 v40, 0xff800000")
            a("s_nop 1")
            for i in range(4): a(f"v_cndmask_b32 v{b+i}, v40, v{b+i}, vcc")
            a(f"v_mov_b32 v40, {NEG:#x}")
            tb = b + 4 * (qt + 1)
            for jj in range(4):
                a(f"v_cmp_gt_i32 vcc, {jj}, v8")
                a("s_nop 1")
                a(f"v_cndmask_b32 v{tb+jj}, v{tb+jj}, v40, vcc")
            if qt == 0:
                for jj in range(4): a(f"v_mov_b32 v{b+8+jj}, v40")
            a(f"v_max3_f32 v41, v{b}, v{b+1}, v{b+2}")
            for i in range(3, 11, 2): a(f"v_max3_f32 v41, v41, v{b+i}, v{b+i+1}")
            a(f"v_max_f32 v41, v41, v{b+11}")
            def xlane(op, r):
                a(f"v_mov_b32 v42, v{r}")
                a("s_nop 1")
                a(f"v_permlane32_swap_b32 v{r}, v42")
                a("s_nop 1")
                a(f"{op} v{r}, v{r}, v42")
                a(f"v_mov_b32 v42, v{r}")
                a("s_nop 1")
                a(f"v_permlane16_swap_b32 v{r}, v42")
                a("s_nop 1")
                a(f"{op} v{r}, v{r}, v42")
            xlane("v_max_f32", 41)
            a("s_mov_b32 s42, 0x3fb8aa3b")
            for i in range(12):
                a(f"v_sub_f32 v{b+i}, v{b+i}, v41")
                a(f"v_mul_f32 v{b+i}, s42, v{b+i}")
                a(f"v_exp_f32 v{b+i}, v{b+i}")
            a("s_nop 0")
            a(f"v_add_f32 v43, v{b}, v{b+1}")
            for i in range(2, 12): a(f"v_add_f32 v43, v43, v{b+i}")
            xlane("v_add_f32", 43)
            a("v_rcp_f32 v43, v43")
            a("s_nop 0")
            for i in range(12): a(f"v_mul_f32 v{b+i}, v{b+i}, v43")
            for i in range(6): a(f"v_cvt_pk_bf16_f32 v{44+i}, v{b+2*i}, v{b+2*i+1}")
            a("s_nop 1")
            a("v_permlane32_swap_b32 v46, v48")
            a("v_permlane32_swap_b32 v47, v49")
            a("s_nop 1")
            a("v_permlane16_swap_b32 v46, v48")
            a("v_permlane16_swap_b32 v47, v49")
            off = 2560 * hh + 1280 * qt
            a(f"ds_write_b128 v9, v[46:49] offset:{off}")
            a(f"ds_write_b64 v10, v[44:45] offset:{off}")
            a("s_waitcnt lgkmcnt(0)")
    a("s_barrier")
    a("s_and_b32 s50, s38, 1")
    a("s_lshr_b32 s51, s38, 1")
    a("s_mul_i32 s52, s2, 160")
    a("s_mul_i32 s53, s51, 80")
    a("s_add_u32 s52, s52, s53")
    a("v_add_u32 v5, s52, v2")
    a("v_lshlrev_b32 v6, 6, v5")
    a("v_lshl_add_u32 v6, v3, 4, v6")
    a(f"s_mul_i32 s48, s3, {L.H*L.D*64}")
    a("v_mul_u32_u24 v7, 640, v3")
    a("v_add_u32 v7, v7, v5")
    a("v_lshlrev_b32 v7, 4, v7")
    a(f"s_mul_i32 s49, s3, {L.H*L.D*16}")
    a("s_lshl_b32 s53, s50, 4")
    a("v_add_u32 v9, s53, v2")
    a("v_mul_u32_u24 v9, 80, v9")
    a("v_mul_u32_u24 v10, 2560, v3")
    a("v_add_u32 v10, v10, v9")
    a("v_lshl_add_u32 v9, v3, 4, v9")
    a("v_add_u32 v9, 16, v9")
    NK = 40; R = 4
    def bload(k):
        slot = k % R
        for nt in range(5):
            dst = vr(64 + 20 * slot + 4 * nt, 4)
            if k < 32:
                if nt < 4: a(f"buffer_load_dwordx4 {dst}, v6, s[20:23], s48 offen offset:{1024*nt}")
                else: a(f"buffer_load_dwordx4 {dst}, v13, s[20:23], s48 offen")
            else:
                a(f"buffer_load_dwordx4 {dst}, v7, s[24:27], s49 offen offset:{256*nt}")
        if k < 32: a(f"s_add_u32 s48, s48, {640*64}")
        else: a(f"s_add_u32 s49, s49, {4*640*16}")
    def pread(k):
        dst = vr(144 + 4 * (k % R), 4)
        if k < 32:
            if 2560 * k < 65536: a(f"ds_read_b128 {dst}, v9 offset:{2560*k}")
            else: a(f"ds_read_b128 {dst}, v11 offset:{2560*k-40960}")
        else:
            i = k - 32
            if 10240 * i < 65536: a(f"ds_read_b128 {dst}, v10 offset:{10240*i}")
            else: a(f"ds_read_b128 {dst}, v12 offset:{10240*i-40960}")
    a("v_add_u32 v13, 4096, v6")
    a("v_add_u32 v11, 40960, v9")
    a("v_add_u32 v12, 40960, v10")
    for k in range(R - 1): bload(k); pread(k)
    for k in range(NK):
        if k + R - 1 < NK:
            bload(k + R - 1); pread(k + R - 1)
            a(f"s_waitcnt vmcnt({5*(R-1)}) lgkmcnt({R-1})")
        else:
            rem = NK - 1 - k
            a(f"s_waitcnt vmcnt({5*rem}) lgkmcnt({rem})")
        for nt in range(5):
            d = vr(16 + 4 * nt, 4); c = "0" if k == 0 else d
            a(f"v_mfma_f32_16x16x32_bf16 {d}, {vr(64+20*(k%R)+4*nt,4)}, {vr(144+4*(k%R),4)}, {c}")
    a("s_lshl_b32 s53, s3, 5")
    a("s_lshl_b32 s54, s50, 4")
    a("s_add_u32 s53, s53, s54")
    a("v_add_u32 v5, s53, v2")
    a("v_mul_u32_u24 v5, 1280, v5")
    a("v_lshl_add_u32 v5, v3, 3, v5")
    a("s_lshl_b32 s52, s52, 1")
    a("v_add_u32 v5, s52, v5")
    for nt in range(5):
        a(f"buffer_load_dwordx2 {vr(64+4*nt,2)}, v5, s[28:31], 0 offen offset:{32*nt}")
        a(f"buffer_load_dwordx2 {vr(66+4*nt,2)}, v5, s[40:43], 0 offen offset:{32*nt}")
    a("s_waitcnt vmcnt(0)")
    for nt in range(5):
        b = 16 + 4 * nt; x = 64 + 4 * nt; dn = 66 + 4 * nt
        a(f"v_cvt_pk_bf16_f32 v40, v{b}, v{b+1}")
        a(f"v_cvt_pk_bf16_f32 v41, v{b+2}, v{b+3}")
        for q in range(2):
            a(f"v_lshlrev_b32 v42, 16, v{40+q}")
            a(f"v_and_b32 v43, 0xffff0000, v{40+q}")
            a(f"v_lshlrev_b32 v44, 16, v{x+q}")
            a(f"v_and_b32 v45, 0xffff0000, v{x+q}")
            a("v_add_f32 v42, v44, v42")
            a("v_add_f32 v43, v45, v43")
            a("v_cvt_pk_bf16_f32 v46, v42, v43")
            a("v_lshlrev_b32 v42, 16, v46")
            a("v_and_b32 v43, 0xffff0000, v46")
            a(f"v_lshlrev_b32 v44, 16, v{dn+q}")
            a(f"v_and_b32 v45, 0xffff0000, v{dn+q}")
            a("v_add_f32 v42, v42, v44")
            a("v_add_f32 v43, v43, v45")
            a(f"v_cvt_pk_bf16_f32 v{48+2*nt+q}, v42, v43")
        a(f"buffer_store_dwordx2 {vr(48+2*nt,2)}, v5, s[44:47], 0 offen offset:{32*nt}")
    a.label(f"{name}_end")
    a("s_endpgm")
    kernel_desc(a, name, 184 + 120, 56, 184)
    return 256, 110592
```

```python
from asmlib import *
import layout as L

SA = 144
A_TILE = 256 * SA

class GemmCfg:
    def __init__(s, NT, lda, ldb, K, epi, ldc=None):
        s.NT = NT; s.lda = lda; s.ldb = ldb; s.K = K; s.epi = epi; s.ldc = ldc
        s.BN = 2 * NT * 16
        s.SB = s.BN * 2 + 32
        assert ((s.SB // 4) % 16) == 8, s.SB
        s.BUF = A_TILE + 64 * s.SB
        s.NC = K // 64
        if epi == "glu": s.NB = 6; s.bmap = "4"
        elif s.BN == 192: s.NB = 6; s.bmap = "8"
        elif s.BN == 160: s.NB = 5; s.bmap = "4"
        else: raise ValueError
        s.lds = 2 * s.BUF

V_AOFF = 2
V_BOFF = 10
V_AW = 12
V_BW = 14
V_AR = 16
V_BR = 18
V_STA = 20
V_STB = 52
V_F = [76, 132]
V_END = 188
S_SRDA, S_SRDB, S_SRDC, S_SRDB2 = 8, 12, 16, 28
S_KA, S_KB, S_CNT = 20, 21, 22

def gemm_setup_addrs(a, c, nmap=None):
    a("v_lshrrev_b32 v1, 3, v0")
    a("v_and_b32 v60, 7, v0")
    a(f"s_mov_b32 s24, {c.lda*2}")
    a(f"v_mul_lo_u32 v{V_AOFF}, v1, s24")
    a(f"v_lshl_add_u32 v{V_AOFF}, v60, 4, v{V_AOFF}")
    for i in range(1, 8):
        a(f"v_add_u32 v{V_AOFF+i}, {32*i*c.lda*2}, v{V_AOFF}")
    a(f"v_mul_u32_u24 v{V_AW}, {SA}, v1")
    a(f"v_lshl_add_u32 v{V_AW}, v60, 4, v{V_AW}")
    a(f"v_add_u32 v{V_AW+1}, {c.BUF}, v{V_AW}")
    if c.bmap == '8':
        a(f"s_mov_b32 s24, {c.ldb*2}")
        a(f"v_mul_lo_u32 v{V_BOFF}, v1, s24")
        a(f"v_lshl_add_u32 v{V_BOFF}, v60, 4, v{V_BOFF}")
        a(f"v_add_u32 v{V_BOFF+1}, {32*c.ldb*2}, v{V_BOFF}")
        a(f"v_mul_u32_u24 v{V_BW}, {c.SB}, v1")
        a(f"v_lshl_add_u32 v{V_BW}, v60, 4, v{V_BW}")
    else:
        a("v_lshrrev_b32 v61, 2, v0")
        a("v_and_b32 v62, 3, v0")
        a(f"s_mov_b32 s24, {c.ldb*2}")
        a(f"v_mul_lo_u32 v{V_BOFF}, v61, s24")
        a(f"v_lshl_add_u32 v{V_BOFF}, v62, 4, v{V_BOFF}")
        a(f"v_mul_u32_u24 v{V_BW}, {c.SB}, v61")
        a(f"v_lshl_add_u32 v{V_BW}, v62, 4, v{V_BW}")
    a(f"v_add_u32 v{V_BW}, {A_TILE}, v{V_BW}")
    a(f"v_add_u32 v{V_BW+1}, {c.BUF}, v{V_BW}")
    a("v_and_b32 v60, 15, v0")
    a("v_bfe_u32 v61, v0, 4, 2")
    a("v_lshrrev_b32 v62, 7, v0")
    a("v_bfe_u32 v63, v0, 6, 1")
    a("v_lshl_add_u32 v64, v62, 7, v60")
    a(f"v_mul_u32_u24 v{V_AR}, {SA}, v64")
    a(f"v_lshl_add_u32 v{V_AR}, v61, 3, v{V_AR}")
    a(f"v_add_u32 v{V_AR+1}, {c.BUF}, v{V_AR}")
    a("v_lshrrev_b32 v64, 2, v60")
    a("v_lshl_add_u32 v64, v61, 2, v64")
    a(f"v_mul_u32_u24 v{V_BR}, {c.SB}, v64")
    a("v_and_b32 v64, 3, v60")
    a(f"v_lshl_add_u32 v{V_BR}, v64, 3, v{V_BR}")
    wcol = (c.NT * 16) if c.epi != "glu" else 48
    a(f"v_mul_u32_u24 v64, {wcol*2}, v63")
    a(f"v_add_u32 v{V_BR}, v64, v{V_BR}")
    a(f"v_add_u32 v{V_BR}, {A_TILE}, v{V_BR}")
    a(f"v_add_u32 v{V_BR+1}, {c.BUF}, v{V_BR}")

def ncol_off(c, nt):
    if c.epi == "glu":
        return (nt % 3) * 16 + (nt // 3) * 96
    return nt * 16

def gload_list(c):
    out = []
    for i in range(8):
        out.append(f"buffer_load_dwordx4 {vr(V_STA+4*i,4)}, v{V_AOFF+i}, {sr(S_SRDA,4)}, s{S_KA} offen")
    if c.bmap == '8':
        for half in range(2):
            for j in range(3):
                out.append(f"buffer_load_dwordx4 {vr(V_STB+4*(half*3+j),4)}, v{V_BOFF+half}, {sr(S_SRDB,4)}, s{S_KB} offen offset:{128*j}")
    elif c.epi == "glu":
        for j in range(6):
            srd = S_SRDB if j < 3 else S_SRDB2
            out.append(f"buffer_load_dwordx4 {vr(V_STB+4*j,4)}, v{V_BOFF}, {sr(srd,4)}, s{S_KB} offen offset:{64*(j%3)}")
    else:
        for j in range(5):
            out.append(f"buffer_load_dwordx4 {vr(V_STB+4*j,4)}, v{V_BOFF}, {sr(S_SRDB,4)}, s{S_KB} offen offset:{64*j}")
    return out

def lwrite_list(c, buf):
    out = []
    for i in range(8):
        out.append(f"ds_write_b128 v{V_AW+buf}, {vr(V_STA+4*i,4)} offset:{32*SA*i}")
    if c.bmap == '8':
        for half in range(2):
            for j in range(3):
                out.append(f"ds_write_b128 v{V_BW+buf}, {vr(V_STB+4*(half*3+j),4)} offset:{half*32*c.SB+128*j}")
    else:
        for j in range(c.NB):
            out.append(f"ds_write_b128 v{V_BW+buf}, {vr(V_STB+4*j,4)} offset:{64*j}")
    return out

def lread_list(c, buf, ks, fs):
    out = []
    fa = V_F[fs]; fb = V_F[fs] + 32
    for nt in range(c.NT):
        off = 32 * ks * c.SB + ncol_off(c, nt) * 2
        out.append(f"ds_read_b64_tr_b16 {vr(fb+4*nt,2)}, v{V_BR+buf} offset:{off}")
        out.append(f"ds_read_b64_tr_b16 {vr(fb+4*nt+2,2)}, v{V_BR+buf} offset:{off+16*c.SB}")
    for mt in range(8):
        off = 16 * SA * mt + 64 * ks
        out.append(f"ds_read_b64 {vr(fa+4*mt,2)}, v{V_AR+buf} offset:{off}")
        out.append(f"ds_read_b64 {vr(fa+4*mt+2,2)}, v{V_AR+buf} offset:{off+32}")
    return out

def acc_reg(c, mt, nt):
    return (mt * c.NT + nt) * 4

def mfma_list(c, fs):
    fa = V_F[fs]; fb = V_F[fs] + 32
    swapped = c.epi in ("row", "glu")
    out = []
    for mt in range(8):
        for nt in range(c.NT):
            d = ar(acc_reg(c, mt, nt), 4)
            A = vr(fa + 4 * mt, 4); B = vr(fb + 4 * nt, 4)
            if swapped: out.append(f"v_mfma_f32_16x16x32_bf16 {d}, {B}, {A}, {d}")
            else: out.append(f"v_mfma_f32_16x16x32_bf16 {d}, {A}, {B}, {d}")
    return out

def emit_interleaved(a, mf, side, start=0, per=1):
    si = 0
    for i, m in enumerate(mf):
        a(m)
        if i >= start:
            for _ in range(per):
                if si < len(side):
                    a(side[si]); si += 1
    while si < len(side):
        a(side[si]); si += 1

def gemm_main(a, c, tag):
    nacc = 8 * c.NT * 4
    kstepA = 128; kstepB = 64 * c.ldb * 2
    for g in gload_list(c): a(g)
    for i in range(nacc): a(f"v_accvgpr_write_b32 a{i}, 0")
    a(f"s_add_u32 s{S_KA}, s{S_KA}, {kstepA}")
    a(f"s_add_u32 s{S_KB}, s{S_KB}, {kstepB}")
    a("s_waitcnt vmcnt(0)")
    for w in lwrite_list(c, 0): a(w)
    a("s_waitcnt lgkmcnt(0)")
    for g in gload_list(c): a(g)
    a(f"s_add_u32 s{S_KA}, s{S_KA}, {kstepA}")
    a(f"s_add_u32 s{S_KB}, s{S_KB}, {kstepB}")
    a("s_barrier")
    for r in lread_list(c, 0, 0, 0): a(r)
    a(f"s_mov_b32 s{S_CNT}, {c.NC}")
    a("s_waitcnt lgkmcnt(0)")
    loop = f"{tag}_loop"; done = f"{tag}_done"
    a.label(loop)
    for buf in range(2):
        emit_interleaved(a, mfma_list(c, 0), lread_list(c, buf, 1, 1), start=1)
        a("s_waitcnt lgkmcnt(0)")
        mf = mfma_list(c, 1)
        nw = 8 + c.NB
        a("s_waitcnt vmcnt(0)")
        emit_interleaved(a, mf[:nw + 2], lwrite_list(c, 1 - buf), start=0)
        a("s_waitcnt lgkmcnt(0)")
        a("s_barrier")
        rd = lread_list(c, 1 - buf, 0, 0); gl = gload_list(c)
        side = []
        for i in range(max(len(rd), len(gl))):
            if i < len(rd): side.append(rd[i])
            if i % 2 == 1 and i // 2 < len(gl): side.append(gl[i // 2])
        for g in gl[len(rd) // 2:]: side.append(g)
        emit_interleaved(a, mf[nw + 2:], side, start=0, per=2)
        a(f"s_add_u32 s{S_KA}, s{S_KA}, {kstepA}")
        a(f"s_add_u32 s{S_KB}, s{S_KB}, {kstepB}")
        a(f"s_sub_u32 s{S_CNT}, s{S_CNT}, 1")
        a(f"s_cmp_eq_u32 s{S_CNT}, 0")
        a("s_waitcnt lgkmcnt(0)")
        if buf == 0: a(f"s_cbranch_scc1 {done}")
        else: a(f"s_cbranch_scc0 {loop}")
    a.label(done)
    a("s_waitcnt vmcnt(0)")
    a("s_nop 7")

def swap_pair(a, x, y):
    a("s_nop 1")
    a(f"v_permlane32_swap_b32 v{x}, v{y}")
    a(f"v_permlane32_swap_b32 v{x+1}, v{y+1}")
    a("s_nop 1")
    a(f"v_permlane16_swap_b32 v{x}, v{y}")
    a(f"v_permlane16_swap_b32 v{x+1}, v{y+1}")

def cvt_tile(a, accb, dst, tmp):
    for r in range(4): a(f"v_accvgpr_read_b32 v{tmp+r}, a{accb+r}")
    a(f"v_cvt_pk_bf16_f32 v{dst}, v{tmp}, v{tmp+1}")
    a(f"v_cvt_pk_bf16_f32 v{dst+1}, v{tmp+2}, v{tmp+3}")

def epi_row(a, c):
    a("v_and_b32 v60, 15, v0")
    a("v_bfe_u32 v61, v0, 4, 2")
    a("v_lshrrev_b32 v62, 7, v0")
    a("v_bfe_u32 v63, v0, 6, 1")
    a("v_lshl_add_u32 v64, v62, 7, v60")
    a(f"s_mov_b32 s24, {c.ldc*2}")
    a("v_mul_lo_u32 v64, v64, s24")
    a(f"v_mul_u32_u24 v65, {c.NT*32}, v63")
    a("v_lshl_add_u32 v66, v61, 3, v65")
    a("v_add_u32 v66, v64, v66")
    a("v_lshl_add_u32 v65, v61, 4, v65")
    a("v_add_u32 v60, v64, v65")
    for mt in range(8):
        for p in range(c.NT // 2):
            t = 76 + 8 * ((mt * 3 + p) % 8)
            cvt_tile(a, acc_reg(c, mt, 2 * p), t, 148)
            cvt_tile(a, acc_reg(c, mt, 2 * p + 1), t + 2, 152)
            swap_pair(a, t, t + 2)
            a(f"buffer_store_dwordx4 {vr(t,4)}, v60, {sr(S_SRDC,4)}, s23 offen offset:{64*p}")
        if c.NT % 2:
            t = 140 + 2 * (mt % 4)
            cvt_tile(a, acc_reg(c, mt, c.NT - 1), t, 148)
            a(f"buffer_store_dwordx2 {vr(t,2)}, v66, {sr(S_SRDC,4)}, s23 offen offset:{32*(c.NT-1)}")
            if mt < 7: a(f"v_add_u32 v66, {16*c.ldc*2}, v66")
        if mt < 7: a(f"v_add_u32 v60, {16*c.ldc*2}, v60")

def epi_glu(a, c):
    a("v_and_b32 v60, 15, v0")
    a("v_bfe_u32 v61, v0, 4, 2")
    a("v_lshrrev_b32 v62, 7, v0")
    a("v_bfe_u32 v63, v0, 6, 1")
    a("v_lshl_add_u32 v64, v62, 7, v60")
    a(f"s_mov_b32 s24, {c.ldc*2}")
    a("v_mul_lo_u32 v64, v64, s24")
    a("v_mul_u32_u24 v65, 96, v63")
    a("v_add_u32 v66, v64, v65")
    a("v_lshl_add_u32 v60, v61, 4, v66")
    a("v_lshl_add_u32 v67, v61, 3, v66")
    for mt in range(8):
        t = 76 + 8 * (mt % 4)
        for j in range(3):
            gb = acc_reg(c, mt, j); ub = acc_reg(c, mt, j + 3)
            for r in range(4):
                a(f"v_accvgpr_read_b32 v{148+r}, a{gb+r}")
                a(f"v_accvgpr_read_b32 v{152+r}, a{ub+r}")
            a("v_cvt_pk_bf16_f32 v156, v148, v149")
            a("v_cvt_pk_bf16_f32 v157, v150, v151")
            a("v_cvt_pk_bf16_f32 v158, v152, v153")
            a("v_cvt_pk_bf16_f32 v159, v154, v155")
            for q in range(2):
                a(f"v_lshlrev_b32 v{148+2*q}, 16, v{156+q}")
                a(f"v_and_b32 v{149+2*q}, 0xffff0000, v{156+q}")
                a(f"v_lshlrev_b32 v{152+2*q}, 16, v{158+q}")
                a(f"v_and_b32 v{153+2*q}, 0xffff0000, v{158+q}")
            for r in range(4):
                a(f"v_cmp_lt_f32 vcc, 0, v{148+r}")
                a("s_nop 1")
                a(f"v_cndmask_b32 v156, 0, 1.0, vcc")
                a(f"v_mul_f32 v{148+r}, v{148+r}, v156")
                a(f"v_mul_f32 v{148+r}, v{148+r}, v{152+r}")
            a(f"v_cvt_pk_bf16_f32 v{t+2*j}, v148, v149")
            a(f"v_cvt_pk_bf16_f32 v{t+2*j+1}, v150, v151")
        swap_pair(a, t, t + 2)
        a(f"buffer_store_dwordx4 {vr(t,4)}, v60, {sr(S_SRDC,4)}, s23 offen")
        a(f"buffer_store_dwordx2 {vr(t+4,2)}, v67, {sr(S_SRDC,4)}, s23 offen offset:64")
        if mt < 7:
            a(f"v_add_u32 v60, {16*c.ldc*2}, v60")
            a(f"v_add_u32 v67, {16*c.ldc*2}, v67")

def epi_trans(a, c, colstride, pairstride):
    a("v_and_b32 v60, 15, v0")
    a("v_bfe_u32 v61, v0, 4, 2")
    a("v_lshrrev_b32 v62, 7, v0")
    a("v_bfe_u32 v63, v0, 6, 1")
    a(f"v_mul_u32_u24 v64, {c.NT*16}, v63")
    a("v_add_u32 v64, v64, v60")
    a(f"v_mul_u32_u24 v64, {colstride}, v64")
    a("v_lshl_add_u32 v64, v61, 4, v64")
    a(f"s_mov_b32 s24, {4*pairstride}")
    a("v_mul_lo_u32 v65, v62, s24")
    a("v_add_u32 v60, v64, v65")
    k = 0
    for p in range(4):
        for nt in range(c.NT):
            t = 76 + 8 * (k % 8); k += 1
            cvt_tile(a, acc_reg(c, 2 * p, nt), t, 148)
            cvt_tile(a, acc_reg(c, 2 * p + 1, nt), t + 2, 152)
            swap_pair(a, t, t + 2)
            off = 16 * nt * colstride
            if off < 4096:
                a(f"buffer_store_dwordx4 {vr(t,4)}, v60, {sr(S_SRDC,4)}, s23 offen offset:{off}")
            else:
                a(f"v_add_u32 v66, {off}, v60")
                a(f"buffer_store_dwordx4 {vr(t,4)}, v66, {sr(S_SRDC,4)}, s23 offen")
        if p < 3: a(f"v_add_u32 v60, {pairstride}, v60")
```

```python
from asmlib import *
import layout as L

def wave_sum(a, v, s):
    for mod in ("row_shr:1", "row_shr:2", "row_shr:4", "row_shr:8"):
        a("s_nop 1")
        a(f"v_add_f32_dpp v{v}, v{v}, v{v} {mod} row_mask:0xf bank_mask:0xf")
    a("s_nop 1")
    a(f"v_add_f32_dpp v{v}, v{v}, v{v} row_bcast:15 row_mask:0xa bank_mask:0xf")
    a("s_nop 1")
    a(f"v_add_f32_dpp v{v}, v{v}, v{v} row_bcast:31 row_mask:0xc bank_mask:0xf")
    a("s_nop 1")
    a(f"v_readlane_b32 s{s}, v{v}, 63")

def gen_prep(a, name="prep_kernel"):
    kernel_begin(a, name)
    a("s_cmp_ge_u32 s2, 512")
    a("s_cbranch_scc1 prep_done")
    a(f"s_load_dwordx2 s[4:5], s[0:1], {KARG['A_x']}")
    a(f"s_load_dwordx2 s[6:7], s[0:1], {KARG['A_mem0']}")
    a(f"s_load_dwordx2 s[24:25], s[0:1], {KARG['ws']}")
    a("s_waitcnt lgkmcnt(0)")
    make_srd(a, 8, 4, L.S * L.D * 2)
    make_srd(a, 12, 24, L.S * L.D * 2, L.XN)
    fill_lo = L.MEMB + 10240
    fill_n = L.PB + L.NSEG * 20480 - fill_lo
    make_srd(a, 16, 24, fill_n, fill_lo)
    make_srd(a, 20, 6, 10240)
    make_srd(a, 28, 24, 10240, L.MEMB)
    a("s_lshl_b32 s3, s2, 8")
    a("v_add_u32 v1, s3, v0")
    a("v_lshlrev_b32 v2, 4, v1")
    a("v_mov_b32 v4, -1\nv_mov_b32 v5, -1\nv_mov_b32 v6, -1\nv_mov_b32 v7, -1")
    a("buffer_store_dwordx4 v[4:7], v2, s[16:19], 0 offen")
    a("v_lshrrev_b32 v3, 3, v1")
    a("v_and_b32 v8, 7, v1")
    a("v_mul_u32_u24 v8, 1280, v8")
    a("v_lshl_add_u32 v8, v3, 4, v8")
    a("v_mov_b32 v9, 0x7fffffff")
    a("v_cmp_gt_u32 vcc, 640, v1")
    a("s_nop 1")
    a("v_cndmask_b32 v8, v9, v8, vcc")
    a("v_cndmask_b32 v2, v9, v2, vcc")
    a("buffer_load_dwordx4 v[40:43], v8, s[20:23], 0 offen")
    a("v_lshrrev_b32 v10, 6, v0")
    a("v_and_b32 v11, 63, v0")
    a("s_lshl_b32 s3, s2, 2")
    a("v_add_u32 v10, s3, v10")
    a("v_mul_u32_u24 v10, 1280, v10")
    a("v_lshl_add_u32 v10, v11, 2, v10")
    for k in range(5):
        a(f"buffer_load_dword v{12+k}, v10, s[8:11], 0 offen offset:{256*k}")
    a("s_waitcnt vmcnt(5)")
    for i in range(4):
        a(f"v_min_u32 v{40+i}, -2, v{40+i}")
    a("buffer_store_dwordx4 v[40:43], v2, s[28:31], 0 offen")
    a("s_waitcnt vmcnt(1)")
    for k in range(5):
        a(f"v_lshlrev_b32 v{20+2*k}, 16, v{12+k}")
        a(f"v_and_b32 v{21+2*k}, 0xffff0000, v{12+k}")
    a("v_add_f32 v30, v20, v21")
    for i in range(2, 10):
        a(f"v_add_f32 v30, v30, v{20+i}")
    wave_sum(a, 30, 34)
    a("s_nop 3")
    a("v_mov_b32 v31, 0x3acccccd")
    a("v_mul_f32 v31, s34, v31")
    for i in range(10):
        a(f"v_sub_f32 v{44+i}, v{20+i}, v31")
    a("v_mul_f32 v30, v44, v44")
    for i in range(1, 10):
        a(f"v_fmac_f32 v30, v{44+i}, v{44+i}")
    wave_sum(a, 30, 35)
    a("s_nop 3")
    a("v_mov_b32 v32, 0x3acccccd")
    a("v_mul_f32 v32, s35, v32")
    a("v_cvt_pk_bf16_f32 v33, v31, v32")
    a("v_lshlrev_b32 v31, 16, v33")
    a("v_and_b32 v32, 0xffff0000, v33")
    a("v_add_f32 v32, 0x3727c5ac, v32")
    a("v_cvt_pk_bf16_f32 v33, v32, v32")
    a("v_and_b32 v32, 0xffff0000, v33")
    a("v_sqrt_f32 v32, v32")
    a("s_nop 0")
    a("v_cvt_pk_bf16_f32 v33, v32, v32")
    a("v_and_b32 v32, 0xffff0000, v33")
    a("v_rcp_f32 v34, v32")
    a("s_nop 0")
    for k in range(5):
        a(f"v_sub_f32 v36, v{20+2*k}, v31")
        a(f"v_sub_f32 v37, v{21+2*k}, v31")
        a("v_cvt_pk_bf16_f32 v38, v36, v37")
        a("v_lshlrev_b32 v36, 16, v38")
        a("v_and_b32 v37, 0xffff0000, v38")
        a("v_mul_f32 v38, v36, v34")
        a("v_mul_f32 v39, v37, v34")
        a("v_fma_f32 v36, -v38, v32, v36")
        a("v_fma_f32 v37, -v39, v32, v37")
        a("v_fmac_f32 v38, v36, v34")
        a("v_fmac_f32 v39, v37, v34")
        a(f"v_cvt_pk_bf16_f32 v{12+k}, v38, v39")
        a(f"buffer_store_dword v{12+k}, v10, s[12:15], 0 offen offset:{256*k}")
    a.label("prep_done")
    a("s_endpgm")
    kernel_desc(a, name, 64, 40)
```

```python
S, D, H, DH, M, SEG, F = 2048, 640, 32, 192, 8, 32, 1536
NSEG = S // SEG
HD = H * DH
NO = 80
def _al(x, a=4096): return (x + a - 1) // a * a
off = 0
def _take(n):
    global off
    o = off; off = _al(off + n); return o
XN   = _take(S * D * 2)
KX   = _take(S * HD * 2)
VX   = _take(S * HD * 2)
QX   = _take(S * HD * 2)
BT   = _take(H * D * D * 2)
UX   = _take(NSEG * H * D * SEG * 2)
HH   = _take(S * F * 2)
MEMB = _take((NSEG + 1) * 10240)
PB   = _take(NSEG * 20480)
KM   = _take(NSEG * M * HD * 2)
UM   = _take(NSEG * H * D * M * 2)
DOWN = _take(S * D * 2)
FLAGS = _take(65536)
WS_USED = off
WS_BYTES = 268435456
assert WS_USED <= WS_BYTES
if __name__ == "__main__":
    for k in "XN KX VX QX BT UX HH MEMB PB KM UM FLAGS WS_USED".split(): print(k, globals()[k])
```

```python
import sys
from asmlib import *
import layout as L
from k_prep import gen_prep
from k_gemm import *

HEADER = open("parallel_sum__memory_aug_recurrent_mem_tr__glu_gated_reglu__prompt.s.ref").read().split("; Override launch")[0]

def gen_qkv(a, name="qkv_kernel"):
    c = GemmCfg(6, L.D, L.HD, L.D, "row", ldc=L.HD)
    kernel_begin(a, name)
    a("s_cmp_ge_u32 s2, 768")
    a(f"s_cbranch_scc1 {name}_end")
    a(f"s_load_dwordx2 s[4:5], s[0:1], {KARG['ws']}")
    a(f"s_load_dwordx4 s[32:35], s[0:1], {KARG['A_Wq']}")
    a(f"s_load_dwordx2 s[36:37], s[0:1], {KARG['A_Wv']}")
    a("s_and_b32 s25, s2, 7")
    a("s_lshr_b32 s26, s2, 3")
    a("s_lshr_b32 s27, s26, 5")
    a("s_and_b32 s26, s26, 31")
    a("s_waitcnt lgkmcnt(0)")
    make_srd(a, S_SRDA, 4, L.S * L.D * 2, L.XN)
    a("s_cmp_eq_u32 s27, 0")
    a("s_cselect_b32 s40, s34, s36")
    a("s_cselect_b32 s41, s35, s37")
    a("s_cmp_eq_u32 s27, 2")
    a("s_cselect_b32 s40, s32, s40")
    a("s_cselect_b32 s41, s33, s41")
    make_srd(a, S_SRDB, 40, L.D * L.HD * 2)
    make_srd(a, S_SRDC, 4, 3 * L.S * L.HD * 2, L.KX)
    assert L.VX == L.KX + L.S * L.HD * 2 and L.QX == L.VX + L.S * L.HD * 2
    a(f"s_mul_i32 s{S_KA}, s25, {256*L.D*2}")
    a(f"s_mul_i32 s{S_KB}, s26, {192*2}")
    a(f"s_mul_i32 s23, s27, {L.S*L.HD*2}")
    a(f"s_mul_i32 s24, s25, {256*L.HD*2}")
    a("s_add_u32 s23, s23, s24")
    a(f"s_add_u32 s23, s23, s{S_KB}")
    gemm_setup_addrs(a, c)
    gemm_main(a, c, name)
    epi_row(a, c)
    a.label(f"{name}_end")
    a("s_endpgm")
    kernel_desc(a, name, 188 + 192, 48, 188)
    return c

def gen_glu(a, name="glu_kernel"):
    c = GemmCfg(6, L.D, L.F, L.D, "glu", ldc=L.F)
    kernel_begin(a, name)
    a("s_cmp_ge_u32 s2, 128")
    a(f"s_cbranch_scc1 {name}_end")
    a(f"s_load_dwordx2 s[4:5], s[0:1], {KARG['ws']}")
    a(f"s_load_dwordx4 s[32:35], s[0:1], {KARG['B_W_gate']}")
    a("s_and_b32 s25, s2, 7")
    a("s_lshr_b32 s26, s2, 3")
    a("s_waitcnt lgkmcnt(0)")
    make_srd(a, S_SRDA, 4, L.S * L.D * 2, L.XN)
    make_srd(a, S_SRDB, 32, L.D * L.F * 2)
    make_srd(a, S_SRDB2, 34, L.D * L.F * 2)
    make_srd(a, S_SRDC, 4, L.S * L.F * 2, L.HH)
    a(f"s_mul_i32 s{S_KA}, s25, {256*L.D*2}")
    a(f"s_mul_i32 s{S_KB}, s26, {96*2}")
    a(f"s_mul_i32 s23, s25, {256*L.F*2}")
    a(f"s_add_u32 s23, s23, s{S_KB}")
    gemm_setup_addrs(a, c)
    gemm_main(a, c, name)
    epi_glu(a, c)
    a.label(f"{name}_end")
    a("s_endpgm")
    kernel_desc(a, name, 188 + 192, 48, 188)
    return c

def gen_ux(a, name="ux_kernel"):
    c = GemmCfg(5, L.HD, L.D, L.DH, "trans")
    kernel_begin(a, name)
    a("s_cmp_ge_u32 s2, 1024")
    a(f"s_cbranch_scc1 {name}_end")
    a(f"s_load_dwordx2 s[4:5], s[0:1], {KARG['ws']}")
    a(f"s_load_dwordx2 s[32:33], s[0:1], {KARG['A_Wo']}")
    a("s_and_b32 s25, s2, 7")
    a("s_bfe_u32 s26, s2, 0x20003")
    a("s_lshr_b32 s27, s2, 5")
    a("s_waitcnt lgkmcnt(0)")
    make_srd(a, S_SRDA, 4, L.S * L.HD * 2, L.VX)
    make_srd(a, S_SRDB, 32, L.HD * L.D * 2)
    make_srd(a, S_SRDC, 4, L.NSEG * L.H * L.D * 64, L.UX)
    a(f"s_mul_i32 s{S_KA}, s25, {256*L.HD*2}")
    a(f"s_mul_i32 s24, s27, {192*2}")
    a(f"s_add_u32 s{S_KA}, s{S_KA}, s24")
    a(f"s_mul_i32 s{S_KB}, s27, {192*L.D*2}")
    a(f"s_mul_i32 s24, s26, {160*2}")
    a(f"s_add_u32 s{S_KB}, s{S_KB}, s24")
    a("s_lshl_b32 s23, s25, 8")
    a("s_add_u32 s23, s23, s27")
    a("s_mul_i32 s23, s23, 640")
    a("s_mul_i32 s24, s26, 160")
    a("s_add_u32 s23, s23, s24")
    a("s_lshl_b32 s23, s23, 6")
    gemm_setup_addrs(a, c)
    gemm_main(a, c, name)
    epi_trans(a, c, 64, L.H * L.D * 64)
    a.label(f"{name}_end")
    a("s_endpgm")
    kernel_desc(a, name, 188 + 160, 48, 188)
    return c

def gen_bt(a, name="bt_kernel"):
    c = GemmCfg(5, L.HD, L.D, L.DH, "trans")
    kernel_begin(a, name)
    a("s_cmp_ge_u32 s2, 384")
    a(f"s_cbranch_scc1 {name}_end")
    a(f"s_load_dwordx4 s[32:35], s[0:1], {KARG['A_Wv']}")
    a(f"s_load_dwordx2 s[4:5], s[0:1], {KARG['ws']}")
    a("s_lshr_b32 s25, s2, 7")
    a("s_and_b32 s26, s2, 3")
    a("s_bfe_u32 s27, s2, 0x50002")
    a("s_waitcnt lgkmcnt(0)")
    make_srd(a, S_SRDA, 32, L.D * L.HD * 2)
    make_srd(a, S_SRDB, 34, L.HD * L.D * 2)
    make_srd(a, S_SRDC, 4, L.H * L.D * L.D * 2, L.BT)
    a(f"s_mul_i32 s{S_KA}, s25, {256*L.HD*2}")
    a(f"s_mul_i32 s24, s27, {192*2}")
    a(f"s_add_u32 s{S_KA}, s{S_KA}, s24")
    a(f"s_mul_i32 s{S_KB}, s27, {192*L.D*2}")
    a(f"s_mul_i32 s24, s26, {160*2}")
    a(f"s_add_u32 s{S_KB}, s{S_KB}, s24")
    a("s_mul_i32 s23, s27, 640")
    a("s_mul_i32 s24, s26, 160")
    a("s_add_u32 s23, s23, s24")
    a("s_mul_i32 s23, s23, 1280")
    a("s_lshl_b32 s24, s25, 9")
    a("s_add_u32 s23, s23, s24")
    gemm_setup_addrs(a, c)
    gemm_main(a, c, name)
    a("v_readfirstlane_b32 s24, v0")
    a("s_nop 3")
    a("s_lshr_b32 s24, s24, 7")
    a("s_lshl_b32 s24, s24, 1")
    a("s_add_u32 s24, s24, s25")
    a("s_cmp_ge_u32 s24, 4")
    a(f"s_cbranch_scc1 {name}_end")
    epi_trans(a, c, 1280, 64)
    a.label(f"{name}_end")
    a("s_endpgm")
    kernel_desc(a, name, 188 + 160, 48, 188)
    return c

def gen_down(a, name="down_kernel"):
    c = GemmCfg(5, L.F, L.D, L.F, "row", ldc=L.D)
    kernel_begin(a, name)
    a("s_cmp_ge_u32 s2, 32")
    a(f"s_cbranch_scc1 {name}_end")
    a(f"s_load_dwordx2 s[4:5], s[0:1], {KARG['ws']}")
    a(f"s_load_dwordx2 s[32:33], s[0:1], {KARG['B_W_down']}")
    a("s_and_b32 s25, s2, 7")
    a("s_lshr_b32 s26, s2, 3")
    a("s_waitcnt lgkmcnt(0)")
    make_srd(a, S_SRDA, 4, L.S * L.F * 2, L.HH)
    make_srd(a, S_SRDB, 32, L.F * L.D * 2)
    make_srd(a, S_SRDC, 4, L.S * L.D * 2, L.DOWN)
    a(f"s_mul_i32 s{S_KA}, s25, {256*L.F*2}")
    a(f"s_mul_i32 s{S_KB}, s26, {160*2}")
    a(f"s_mul_i32 s23, s25, {256*L.D*2}")
    a(f"s_add_u32 s23, s23, s{S_KB}")
    gemm_setup_addrs(a, c)
    gemm_main(a, c, name)
    epi_row(a, c)
    a.label(f"{name}_end")
    a("s_endpgm")
    kernel_desc(a, name, 188 + 160, 48, 188)
    return c

def build(stages):
    a = Asm()
    launches = []
    body = Asm()
    body.raw('.amdgcn_target "amdgcn-amd-amdhsa--gfx950"')
    if "prep" in stages:
        gen_prep(body); launches.append(("prep_kernel", 512, 256, 0))
    if "qkv" in stages:
        c = gen_qkv(body); launches.append(("qkv_kernel", 768, 256, c.lds))
    if "glu" in stages:
        c = gen_glu(body); launches.append(("glu_kernel", 128, 256, c.lds))
    if "bt" in stages:
        c = gen_bt(body); launches.append(("bt_kernel", 384, 256, c.lds))
    if "ux" in stages:
        c = gen_ux(body); launches.append(("ux_kernel", 1024, 256, c.lds))
    if "down" in stages:
        c = gen_down(body); launches.append(("down_kernel", 32, 256, c.lds))
    if "chain" in stages:
        from k_chain import gen_chain
        lds = gen_chain(body); launches.append(("chain_kernel", 256, 256, lds))
    if "final" in stages:
        from k_final import gen_final
        g, lds = gen_final(body); launches.append(("final_kernel", g, 256, lds))
    hdr = HEADER
    for (k, g, b, l) in launches:
        hdr += f"; @launch kernel={k} grid=({g},1,1) block=({b},1,1) lds={l}\n"
    return hdr + body.text()

if __name__ == "__main__":
    stages = sys.argv[2].split(",") if len(sys.argv) > 2 else ["prep", "qkv", "glu", "bt", "ux", "down", "chain", "final"]
    open(sys.argv[1], "w").write(build(stages))
```
